```python
import torch

def _softmax(x, axis=-1):
    return torch.softmax(x, dim=axis)
def _gelu(x):
    return torch.nn.functional.gelu(x, approximate="tanh")
def _silu(x):
    return torch.nn.functional.silu(x)
def _sigmoid(x):
    return torch.sigmoid(x)
def _layernorm(x, axis=-1, eps=1e-5):
    m = x.mean(dim=axis, keepdim=True)
    v = x.var(dim=axis, keepdim=True, unbiased=False)
    return (x - m) / torch.sqrt(v + eps)
def _scatter_add(tgt, idx, src, axis=0):
    return tgt.clone().index_add_(axis, idx, src)
def _segment_sum(src, seg, n):
    out = torch.zeros((n,) + src.shape[1:], dtype=src.dtype)
    return out.index_add_(0, seg, src)
def _pad(x, pw):
    flat = tuple(v for pair in reversed(pw) for v in pair)
    return torch.nn.functional.pad(x, flat)

kernel_name = 'interleave_layers__sliding_block_cached__dense_activation_mish__decode'

def setup_inputs():

    _w = (lambda a: (lambda t: t.to(torch.bfloat16) if t.is_floating_point() else t)(torch.as_tensor(a)))
    def _A_setup():
        B, Sq, D = 8, 1, 512
        Hq, Hkv, Sk, Dh = 32, 8, 4096, 128
        assert Hq % Hkv == 0, (Hq, Hkv)
        return {
            "x": _w((lambda *s: torch.randn(*s, dtype=torch.bfloat16) * 0.05)(B, Sq, D)),
            "k_cache": _w((lambda *s: torch.randn(*s, dtype=torch.bfloat16) * 0.8)(B, Hkv, Sk, Dh)),
            "v_cache": _w((lambda *s: torch.randn(*s, dtype=torch.bfloat16) * 1.6)(B, Hkv, Sk, Dh)),
            "wq": _w((lambda *s: torch.randn(*s, dtype=torch.bfloat16) * 0.8)(D, Hq * Dh) * (D ** -0.5)),
            "wo": _w((lambda *s: torch.randn(*s, dtype=torch.bfloat16) * 1.6)(Hq * Dh, D) * ((Hq * Dh) ** -0.5)),
        }
    _A_in = _A_setup()

    def _B_setup():
        B, S, D, F = 8, 1, 512, 1792
        return {
            "x": _w((lambda *s: torch.randn(*s, dtype=torch.bfloat16) * 0.05)(B, S, D)),
            "w1": _w((lambda *s: torch.randn(*s, dtype=torch.bfloat16) * 1.6)(D, F) * (D ** -0.5)),
            "b1": _w((lambda *s: torch.randn(*s, dtype=torch.bfloat16) * 0.4)(F)),
            "w2": _w((lambda *s: torch.randn(*s, dtype=torch.bfloat16) * 0.2)(F, D) * (F ** -0.5)),
        }
    _B_in = _B_setup()

    return {
        "A_x": _A_in["x"],
        "A_k_cache": _A_in["k_cache"],
        "A_v_cache": _A_in["v_cache"],
        "A_wq": _A_in["wq"],
        "A_wo": _A_in["wo"],
        "B_x": _B_in["x"],
        "B_w1": _B_in["w1"],
        "B_b1": _B_in["b1"],
        "B_w2": _B_in["w2"],
    }

def reference(A_x, A_k_cache, A_v_cache, A_wq, A_wo, B_x, B_w1, B_b1, B_w2):
    def _A_ref(x, k_cache, v_cache, wq, wo):
        B, Sq, D = x.shape
        Hq, Dh = 32, 128
        Hkv, Sk = k_cache.shape[1], k_cache.shape[2]
        W = min(4096, max(256, Sk // 4))
        rep = Hq // Hkv
        q = (lambda x, *d: x.permute(*d))((x @ wq).reshape(B, Sq, Hq, Dh), 0, 2, 1, 3)
        k = (lambda x, n, axis: torch.repeat_interleave(x, n, dim=axis))(k_cache[:, :, Sk - W:, :], rep, axis=1)
        v = (lambda x, n, axis: torch.repeat_interleave(x, n, dim=axis))(v_cache[:, :, Sk - W:, :], rep, axis=1)
        scores = torch.einsum("bhqd,bhkd->bhqk", q, k) * (Dh ** -0.5)
        p = _softmax(scores, axis=-1)
        o = torch.einsum("bhqk,bhkd->bhqd", p, v)
        return (lambda x, *d: x.permute(*d))(o, 0, 2, 1, 3).reshape(B, Sq, Hq * Dh) @ wo

    def _B_ref(x, w1, b1, w2):
        h = torch.einsum("bsd,df->bsf", x, w1) + b1
        sp = torch.log1p(torch.exp(-torch.abs(h))) + torch.where(h > 0, h, torch.zeros_like(h))
        act = h * torch.tanh(sp)
        return torch.einsum("bsf,fd->bsd", act, w2)

    x = A_x
    x = x + _A_ref(_layernorm(x, axis=-1), A_k_cache, A_v_cache, A_wq, A_wo)
    x = x + _B_ref(_layernorm(x, axis=-1), B_w1, B_b1, B_w2)
    x = x + _A_ref(_layernorm(x, axis=-1), A_k_cache, A_v_cache, A_wq, A_wo)
    x = x + _B_ref(_layernorm(x, axis=-1), B_w1, B_b1, B_w2)
    return x
```

```python
from asmlib import *
def srd(d, base, size):
    return f"""  s_mov_b32 s{d}, s{base}
  s_mov_b32 s{d+1}, s{base+1}
  s_mov_b32 s{d+2}, {size}
  s_mov_b32 s{d+3}, 0x20000
"""
def k(name, idx, stfl, nst, prio, probe_store):
    b = f"""
  s_memrealtime s[60:61]
  s_load_dwordx4 s[4:7], s[0:1], 8      ; k, v
  s_load_dwordx2 s[16:17], s[0:1], 88   ; ws
  s_and_b32 s20, s2, 7     ; g
  s_lshr_b32 s21, s2, 3    ; j
  s_lshr_b32 s22, s21, 2   ; b
  s_and_b32 s23, s21, 3    ; chunk
  v_lshrrev_b32 v11, 6, v0
  v_and_b32 v1, 3, v11
  v_and_b32 v2, 63, v0
  s_nop 0
  v_readfirstlane_b32 s58, v11
  s_waitcnt lgkmcnt(0)
"""
    b += srd(24,4,0x4000000)+srd(28,6,0x4000000)+srd(32,16,0x10000000)
    b += f"""
  s_lshl_b32 s50, s22, 3
  s_add_u32 s50, s50, s20
  s_lshl_b32 s50, s50, 12
  s_lshl_b32 s51, s23, 8
  s_add_u32 s50, s50, s51
  s_add_u32 s50, s50, 3072
  s_lshl_b32 s51, s58, 6
  s_add_u32 s50, s50, s51
  s_lshl_b32 s50, s50, 8
  s_cmp_ge_u32 s58, 4
  s_cbranch_scc1 {name}_h
  v_and_b32 v5, 15, v2
  v_lshlrev_b32 v5, 8, v5
  v_lshrrev_b32 v6, 4, v2
  v_lshlrev_b32 v6, 4, v6
  v_add_u32 v5, v5, v6
  v_lshrrev_b32 v7, 4, v2
  v_lshlrev_b32 v7, 10, v7
  v_and_b32 v6, 15, v2
  v_lshlrev_b32 v6, 4, v6
  v_add_u32 v7, v7, v6
  s_barrier
"""
    r=16
    for t in range(4):
        for s in range(4):
            b += f"  s_add_u32 s55, s50, {t*4096}\n  buffer_load_dwordx4 v[{r}:{r+3}], v5, s[24:27], s55 offen offset:{s*64} nt\n"; r+=4
    for u in range(2):
        for j in range(8):
            b += f"  s_add_u32 s55, s50, {u*8192+(j>>2)*4096}\n  buffer_load_dwordx4 v[{r}:{r+3}], v7, s[28:31], s55 offen offset:{(j&3)*256} nt\n"; r+=4
    b += f"""
  s_memrealtime s[62:63]
  s_waitcnt vmcnt(16)
  s_memrealtime s[64:65]
  s_waitcnt vmcnt(0)
  s_memrealtime s[66:67]
  s_mov_b32 s68, 0
  s_mov_b32 s70, 0
  s_mov_b32 s72, 0
  s_mov_b32 s74, 0
  s_mov_b32 s76, 0
  s_mov_b32 s78, 0
  s_mov_b32 s80, 0
  s_mov_b32 s82, 0
  s_mov_b32 s84, 0
  s_mov_b32 s86, 0
  s_mov_b32 s88, 0
  s_mov_b32 s90, 0
  s_branch {name}_fin
{name}_h:
  s_mul_i32 s52, s2, 10240
  v_lshlrev_b32 v4, 4, v2
  v_add_u32 v4, s52, v4
  v_mov_b32 v8, -1
  v_mov_b32 v9, -1
  v_mov_b32 v10, -1
  v_mov_b32 v11, -1
"""
    for n in range(nst):
        if n in (4,8): b += "  v_add_u32 v4, 4096, v4\n"
        b += f"  buffer_store_dwordx4 v[8:11], v4, s[32:35], 0 offen offset:{(n%4)*1024} {stfl}\n"
    b += f"""
  s_barrier
  s_waitcnt vmcnt(0)
  s_memrealtime s[62:63]
  s_lshl_b32 s53, s20, 12
  s_add_u32 s53, s53, 0x400000
  v_lshlrev_b32 v4, 4, v2
"""
    for p in range(13):
        if prio: b += "  s_setprio 3\n"
        if probe_store:
            b += f"  buffer_store_dwordx4 v[8:11], v4, s[32:35], s53 offen offset:2048\n"
        else:
            b += f"  buffer_load_dwordx4 v[12:15], v4, s[32:35], s53 offen sc1\n"
        if prio: b += "  s_setprio 0\n"
        b += f"  s_waitcnt vmcnt(0)\n  s_memrealtime s[{64+2*p}:{65+2*p}]\n  s_sleep 4\n"
    b += f"""
{name}_fin:
  s_waitcnt lgkmcnt(0)
  s_add_u32 s16, s16, {192<<20}
  s_addc_u32 s17, s17, 0
  s_mov_b32 s18, 0x1000000
  s_mov_b32 s19, 0x20000
  s_lshl_b32 s59, s2, 3
  s_add_u32 s59, s59, s58
  s_lshl_b32 s59, s59, 6
  s_add_u32 s59, s59, {idx*131072}
  v_mov_b32 v1, s59
  s_mov_b64 exec, 1
  v_mov_b32 v2, s60
  buffer_store_dword v2, v1, s[16:19], 0 offen
"""
    for q in range(15):
        b += f"  v_mov_b32 v2, s{62+2*q}\n  buffer_store_dword v2, v1, s[16:19], 0 offen offset:{4+4*q}\n"
    b += "  s_waitcnt vmcnt(0)\n"
    return (name, b, 256, 102, 320)
cfg=[("sc1",10,0,0),("sc1",10,1,0),("",10,1,0),("sc1 nt",10,1,0),("sc0 sc1",10,1,0),("sc1",4,1,0),("sc1",10,1,1),("sc1",0,1,0)]
ks=[k(f"st{i}_kernel",i,*c) for i,c in enumerate(cfg)]
build("mb7", ks)
```
